```python
import torch

def _softmax(x, axis=-1):
    return torch.softmax(x, dim=axis)
def _gelu(x):
    return torch.nn.functional.gelu(x, approximate="tanh")
def _silu(x):
    return torch.nn.functional.silu(x)
def _sigmoid(x):
    return torch.sigmoid(x)
def _layernorm(x, axis=-1, eps=1e-5):
    m = x.mean(dim=axis, keepdim=True)
    v = x.var(dim=axis, keepdim=True, unbiased=False)
    return (x - m) / torch.sqrt(v + eps)
def _scatter_add(tgt, idx, src, axis=0):
    return tgt.clone().index_add_(axis, idx, src)
def _segment_sum(src, seg, n):
    out = torch.zeros((n,) + src.shape[1:], dtype=src.dtype)
    return out.index_add_(0, seg, src)
def _pad(x, pw):
    flat = tuple(v for pair in reversed(pw) for v in pair)
    return torch.nn.functional.pad(x, flat)

kernel_name = 'concat_heads__mha_block_cached__gqa_block_cached__near_ridge'

def setup_inputs():

    _w = (lambda a: (lambda t: t.to(torch.bfloat16) if t.is_floating_point() else t)(torch.as_tensor(a)))
    def _A_setup():
        B, Sq, D = 8, 144, 640
        H, Sk, Dh = 32, 512, 128
        return {
            "x": _w((lambda *s: torch.randn(*s, dtype=torch.bfloat16) * 0.8)(B, Sq, D)),
            "k_cache": _w((lambda *s: torch.randn(*s, dtype=torch.bfloat16) * 0.8)(B, H, Sk, Dh)),
            "v_cache": _w((lambda *s: torch.randn(*s, dtype=torch.bfloat16) * 0.05)(B, H, Sk, Dh)),
            "wq": _w((lambda *s: torch.randn(*s, dtype=torch.bfloat16) * 0.8)(D, H * Dh) * (D ** -0.5)),
            "wo": _w((lambda *s: torch.randn(*s, dtype=torch.bfloat16) * 0.05)(H * Dh, D) * ((H * Dh) ** -0.5)),
        }
    _A_in = _A_setup()

    def _B_setup():
        B, Sq, D = 8, 144, 640
        Hq, Hkv, Sk, Dh = 32, 32, 512, 128
        assert Hq % Hkv == 0, (Hq, Hkv)
        return {
            "x": _w((lambda *s: torch.randn(*s, dtype=torch.bfloat16) * 0.8)(B, Sq, D)),
            "k_cache": _w((lambda *s: torch.randn(*s, dtype=torch.bfloat16) * 0.8)(B, Hkv, Sk, Dh)),
            "v_cache": _w((lambda *s: torch.randn(*s, dtype=torch.bfloat16) * 0.05)(B, Hkv, Sk, Dh)),
            "wq": _w((lambda *s: torch.randn(*s, dtype=torch.bfloat16) * 0.8)(D, Hq * Dh) * (D ** -0.5)),
            "wo": _w((lambda *s: torch.randn(*s, dtype=torch.bfloat16) * 0.05)(Hq * Dh, D) * ((Hq * Dh) ** -0.5)),
        }
    _B_in = _B_setup()

    return {
        "A_x": _A_in["x"],
        "A_k_cache": _A_in["k_cache"],
        "A_v_cache": _A_in["v_cache"],
        "A_wq": _A_in["wq"],
        "A_wo": _A_in["wo"],
        "B_x": _B_in["x"],
        "B_k_cache": _B_in["k_cache"],
        "B_v_cache": _B_in["v_cache"],
        "B_wq": _B_in["wq"],
        "B_wo": _B_in["wo"],
    }

def reference(A_x, A_k_cache, A_v_cache, A_wq, A_wo, B_x, B_k_cache, B_v_cache, B_wq, B_wo):
    def _A_ref(x, k_cache, v_cache, wq, wo):
        B, Sq, D = x.shape
        H, Dh = 32, 128
        q = (lambda x, *d: x.permute(*d))((x @ wq).reshape(B, Sq, H, Dh), 0, 2, 1, 3)
        scores = torch.einsum("bhqd,bhkd->bhqk", q, k_cache) * (Dh ** -0.5)
        p = _softmax(scores, axis=-1)
        o = torch.einsum("bhqk,bhkd->bhqd", p, v_cache)
        return (lambda x, *d: x.permute(*d))(o, 0, 2, 1, 3).reshape(B, Sq, H * Dh) @ wo

    def _B_ref(x, k_cache, v_cache, wq, wo):
        B, Sq, D = x.shape
        Hq, Dh = 32, 128
        Hkv = k_cache.shape[1]
        rep = Hq // Hkv
        q = (lambda x, *d: x.permute(*d))((x @ wq).reshape(B, Sq, Hq, Dh), 0, 2, 1, 3)
        k = (lambda x, n, axis: torch.repeat_interleave(x, n, dim=axis))(k_cache, rep, axis=1)
        v = (lambda x, n, axis: torch.repeat_interleave(x, n, dim=axis))(v_cache, rep, axis=1)
        scores = torch.einsum("bhqd,bhkd->bhqk", q, k) * (Dh ** -0.5)
        p = _softmax(scores, axis=-1)
        o = torch.einsum("bhqk,bhkd->bhqd", p, v)
        return (lambda x, *d: x.permute(*d))(o, 0, 2, 1, 3).reshape(B, Sq, Hq * Dh) @ wo

    a = _A_ref(A_x, A_k_cache, A_v_cache, A_wq, A_wo)
    b = _B_ref(B_x, B_k_cache, B_v_cache, B_wq, B_wo)
    return torch.concatenate([a, b], axis=-1)
```

```python
def vr(b, n=1):
    return f"v{b}" if n == 1 else f"v[{b}:{b + n - 1}]"


def sr(b, n=1):
    return f"s{b}" if n == 1 else f"s[{b}:{b + n - 1}]"


def rng(b, n):
    return list(range(b, b + n))


class Asm:
    def __init__(self):
        self.lines = []
        self.reset_state()

    def reset_state(self):
        self.slot = 0
        NEG = -1000
        self.NEG = NEG
        self.w_valu = {}
        self.w_trans = {}
        self.w_mfma = {}
        self.mfma_d = {}
        self.r_mfmaC = {}
        self.r_store = {}
        self.w_valu_s = {}
        self.w_m0 = NEG
        self.lg_issued = 0
        self.lg_done = 0
        self.lg_pend = {}
        self.vm_issued = 0
        self.vm_done = 0
        self.vm_pend = {}
        self.vm_tags = {}

    def raw(self, text, slots=1):
        self.lines.append("    " + text)
        self.slot += slots

    def comment(self, text):
        self.lines.append("    ; " + text)

    def label(self, name):
        self.lines.append(name + ":")

    def nop(self, n):
        while n > 0:
            k = min(n, 16)
            self.raw(f"s_nop {k - 1}", k)
            n -= k

    def _need(self, req, table, key, ws):
        s = table.get(key, self.NEG)
        gap = self.slot - s - 1
        if gap < ws:
            return max(req, ws - gap)
        return req

    def wait_lg_seq(self, seq):
        if seq < self.lg_done:
            return
        n = self.lg_issued - (seq + 1)
        n = min(n, 15)
        self.raw(f"s_waitcnt lgkmcnt({n})")
        self.lg_done = self.lg_issued - n
        self._clean()

    def wait_lg_all(self):
        if self.lg_done < self.lg_issued:
            self.raw("s_waitcnt lgkmcnt(0)")
            self.lg_done = self.lg_issued
            self._clean()

    def wait_vm_seq(self, seq):
        if seq < self.vm_done:
            return
        n = self.vm_issued - (seq + 1)
        n = min(n, 63)
        self.raw(f"s_waitcnt vmcnt({n})")
        self.vm_done = self.vm_issued - n
        self._clean()

    def wait_vm_tag(self, tag):
        self.wait_vm_seq(self.vm_tags[tag])

    def wait_vm_all(self):
        if self.vm_done < self.vm_issued:
            self.raw("s_waitcnt vmcnt(0)")
            self.vm_done = self.vm_issued
            self._clean()

    def _clean(self):
        self.lg_pend = {v: s for v, s in self.lg_pend.items() if s >= self.lg_done}
        self.vm_pend = {v: s for v, s in self.vm_pend.items() if s >= self.vm_done}

    def _auto_wait(self, regs):
        lg = -1
        vm = -1
        for v in regs:
            if v in self.lg_pend:
                lg = max(lg, self.lg_pend[v])
            if v in self.vm_pend:
                vm = max(vm, self.vm_pend[v])
        if lg >= 0:
            self.wait_lg_seq(lg)
        if vm >= 0:
            self.wait_vm_seq(vm)

    def salu(self, text, srd=(), m0w=False):
        req = 0
        for s in srd:
            req = self._need(req, self.w_valu_s, s, 2)
        self.nop(req)
        self.raw(text)
        if m0w:
            self.w_m0 = self.slot - 1

    def valu(self, text, rd=(), wr=(), srd=(), swr=(), trans=False, perm=False, rfl=False):
        rd = list(rd)
        wr = list(wr)
        self._auto_wait(rd + wr)
        req = 0
        for v in rd + wr:
            req = self._need(req, self.w_mfma, v, 8)
        for v in wr:
            req = self._need(req, self.r_mfmaC, v, 3)
            req = self._need(req, self.r_store, v, 2)
        if not trans:
            for v in rd:
                req = self._need(req, self.w_trans, v, 1)
        if perm:
            for v in rd:
                req = self._need(req, self.w_valu, v, 2)
        if rfl:
            for v in rd:
                req = self._need(req, self.w_valu, v, 1)
        for s in srd:
            req = self._need(req, self.w_valu_s, s, 2)
        self.nop(req)
        self.raw(text)
        t = self.slot - 1
        for v in wr:
            self.w_valu[v] = t
            if trans:
                self.w_trans[v] = t
            else:
                self.w_trans.pop(v, None)
            self.w_mfma.pop(v, None)
        for s in swr:
            self.w_valu_s[s] = t

    def mfma(self, d, a, b, c, na=4, k32=True):
        A = rng(a, na)
        B = rng(b, na)
        D = rng(d, 4)
        C = rng(c, 4) if c is not None else []
        self._auto_wait(A + B + C + D)
        req = 0
        for v in A + B + C:
            req = self._need(req, self.w_valu, v, 2)
        for v in A + B:
            req = self._need(req, self.w_mfma, v, 8)
        for v in C:
            if self.mfma_d.get(v) == (c, 4):
                continue
            req = self._need(req, self.w_mfma, v, 6)
        self.nop(req)
        name = "v_mfma_f32_16x16x32_bf16" if na == 4 else "v_mfma_f32_16x16x16_bf16"
        cs = vr(c, 4) if c is not None else "0"
        self.raw(f"{name} {vr(d, 4)}, {vr(a, na)}, {vr(b, na)}, {cs}")
        t = self.slot - 1
        for v in D:
            self.w_mfma[v] = t
            self.mfma_d[v] = (d, 4)
            self.w_valu.pop(v, None)
            self.w_trans.pop(v, None)
        for v in C:
            self.r_mfmaC[v] = t

    def _mem_common(self, rd, wr, srd):
        self._auto_wait(list(rd) + list(wr))
        req = 0
        for v in list(rd) + list(wr):
            req = self._need(req, self.w_mfma, v, 8)
        for v in wr:
            req = self._need(req, self.r_store, v, 1)
        for s in srd:
            req = self._need(req, self.w_valu_s, s, 5)
        return req

    def ds(self, text, rd=(), wr=()):
        req = self._mem_common(rd, wr, ())
        self.nop(req)
        self.raw(text)
        seq = self.lg_issued
        self.lg_issued += 1
        for v in wr:
            self.lg_pend[v] = seq
            self.w_valu.pop(v, None)
            self.w_trans.pop(v, None)
            self.w_mfma.pop(v, None)
        return seq

    def vmem(self, text, rd=(), wr=(), srd=(), tag=None, lds=False, store_data=()):
        req = self._mem_common(rd, wr, srd)
        if lds:
            gap = self.slot - self.w_m0 - 1
            if gap < 1:
                req = max(req, 1 - gap)
        self.nop(req)
        self.raw(text)
        seq = self.vm_issued
        self.vm_issued += 1
        for v in wr:
            self.vm_pend[v] = seq
            self.w_valu.pop(v, None)
            self.w_trans.pop(v, None)
            self.w_mfma.pop(v, None)
        for v in store_data:
            self.r_store[v] = self.slot - 1
        if tag is not None:
            self.vm_tags[tag] = seq
        return seq

    def barrier(self):
        self.raw("s_barrier")

    def text(self):
        return "\n".join(self.lines) + "\n"
```

```python
import struct
import sys
import math
from asmlib import Asm, vr, sr, rng

NAME = "concat_heads__mha_block_cached__gqa_block_cached__near_ridge"
K1 = "k1_attn_kernel"
K2 = "k2_oproj_kernel"

CEXP = struct.unpack("<I", struct.pack("<f", math.log2(math.e) / math.sqrt(128.0)))[0]

KV_NT = True


def gen_k1():
    A = Asm()
    SX, SWQ, SK, SV, SO = 40, 44, 48, 52, 56
    S_W, S_W4096, S_C = 60, 61, 62
    S_XO = [64, 65, 66]
    S_OO = [69, 70, 71]
    S_W2048 = 72
    V_LANE, V_M, V_G = 1, 2, 3
    V_DK, V_DV, V_DW0, V_DW1 = 4, 5, 6, 7
    V_KB, V_VB, V_WB = 8, 9, 10
    V_XV, V_L16 = 11, 12
    V_T0, V_T1, V_T2 = 13, 14, 15
    QF = 16
    OA = 64
    SS = 160
    FB = 196
    AD = 228
    V_MX = [236, 237, 238]
    V_LS = [239, 240, 241]
    TMP = 242

    def qf(a, s): return QF + (a * 4 + s) * 4
    def oa(a, t): return OA + (a * 8 + t) * 4
    def ss(a, kt): return SS + (a * 4 + kt) * 4 if a < 2 else 192

    A.label(K1)
    A.raw("s_cmp_ge_u32 s2, 512")
    A.raw("s_cbranch_scc1 L_k1_end")
    A.raw("s_load_dwordx16 s[16:31], s[0:1], 0")
    A.raw("s_load_dwordx4 s[32:35], s[0:1], 64")
    A.raw("s_load_dwordx2 s[36:37], s[0:1], 96")
    A.salu("s_and_b32 s3, s2, 7")
    A.salu("s_lshr_b32 s4, s2, 3")
    A.salu("s_and_b32 s5, s4, 3")
    A.salu("s_lshl_b32 s5, s5, 3")
    A.salu("s_add_u32 s3, s3, s5")
    A.salu("s_lshr_b32 s4, s4, 2")
    A.salu("s_lshr_b32 s5, s4, 3")
    A.salu("s_and_b32 s6, s4, 7")
    A.valu("v_and_b32 v1, 63, v0", rd=[0], wr=[V_LANE])
    A.valu("v_lshrrev_b32 v13, 6, v0", rd=[0], wr=[V_T0])
    A.valu("v_and_b32 v2, 15, v0", rd=[0], wr=[V_M])
    A.valu("v_lshrrev_b32 v3, 4, v1", rd=[V_LANE], wr=[V_G])
    A.valu(f"v_readfirstlane_b32 s{S_W}, v13", rd=[V_T0], swr=[S_W], rfl=True)
    A.raw("s_waitcnt lgkmcnt(0)")
    A.salu("s_cmp_eq_u32 s5, 0")
    A.salu("s_cselect_b64 s[8:9], s[16:17], s[26:27]")
    A.salu("s_cselect_b64 s[10:11], s[18:19], s[28:29]")
    A.salu("s_cselect_b64 s[12:13], s[20:21], s[30:31]")
    A.salu("s_cselect_b64 s[14:15], s[22:23], s[32:33]")
    A.salu("s_mul_i32 s7, s6, 184320")
    A.salu(f"s_add_u32 s{SX}, s8, s7")
    A.salu(f"s_addc_u32 s{SX+1}, s9, 0")
    A.salu(f"s_and_b32 s{SX+1}, s{SX+1}, 0xffff")
    A.salu(f"s_mov_b32 s{SX+2}, 184320")
    A.salu(f"s_mov_b32 s{SX+3}, 0x20000")
    A.salu("s_lshl_b32 s7, s3, 8")
    A.salu(f"s_add_u32 s{SWQ}, s14, s7")
    A.salu(f"s_addc_u32 s{SWQ+1}, s15, 0")
    A.salu(f"s_and_b32 s{SWQ+1}, s{SWQ+1}, 0xffff")
    A.salu(f"s_sub_u32 s{SWQ+2}, {640*8192}, s7")
    A.salu(f"s_mov_b32 s{SWQ+3}, 0x20000")
    A.salu("s_lshl_b32 s7, s6, 5")
    A.salu("s_add_u32 s7, s7, s3")
    A.salu("s_lshl_b32 s7, s7, 17")
    A.salu(f"s_add_u32 s{SK}, s10, s7")
    A.salu(f"s_addc_u32 s{SK+1}, s11, 0")
    A.salu(f"s_and_b32 s{SK+1}, s{SK+1}, 0xffff")
    A.salu(f"s_mov_b32 s{SK+2}, 131072")
    A.salu(f"s_mov_b32 s{SK+3}, 0x20000")
    A.salu(f"s_add_u32 s{SV}, s12, s7")
    A.salu(f"s_addc_u32 s{SV+1}, s13, 0")
    A.salu(f"s_and_b32 s{SV+1}, s{SV+1}, 0xffff")
    A.salu(f"s_mov_b32 s{SV+2}, 131072")
    A.salu(f"s_mov_b32 s{SV+3}, 0x20000")
    A.salu("s_lshl_b32 s7, s4, 5")
    A.salu("s_add_u32 s7, s7, s3")
    A.salu("s_mul_i32 s7, s7, 36864")
    A.salu(f"s_add_u32 s{SO}, s36, s7")
    A.salu(f"s_addc_u32 s{SO+1}, s37, 0")
    A.salu(f"s_and_b32 s{SO+1}, s{SO+1}, 0xffff")
    A.salu(f"s_mov_b32 s{SO+2}, 36864")
    A.salu(f"s_mov_b32 s{SO+3}, 0x20000")
    A.salu(f"s_lshl_b32 s{S_W4096}, s{S_W}, 12", srd=[S_W])
    A.salu(f"s_lshl_b32 s{S_W2048}, s{S_W}, 11")
    A.salu(f"s_mov_b32 s{S_C}, 0x{CEXP:08x}")
    A.salu(f"s_mul_i32 s{S_XO[0]}, s{S_W}, 40960")
    A.salu(f"s_add_u32 s{S_XO[1]}, s{S_XO[0]}, 20480")
    A.salu(f"s_mov_b32 s{S_XO[2]}, 163840")
    A.salu(f"s_lshl_b32 s{S_OO[0]}, s{S_W}, 13")
    A.salu(f"s_add_u32 s{S_OO[1]}, s{S_OO[0]}, 4096")
    A.salu(f"s_lshl_b32 s{S_OO[2]}, s{S_W}, 10")
    A.salu(f"s_add_u32 s{S_OO[2]}, s{S_OO[2]}, 32768")

    T0, T1, T2 = V_T0, V_T1, V_T2
    A.valu("v_xor_b32 v13, v2, v3", rd=[V_M, V_G], wr=[T0])
    A.valu("v_lshlrev_b32 v13, 4, v13", rd=[T0], wr=[T0])
    A.valu("v_lshlrev_b32 v14, 8, v3", rd=[V_G], wr=[T1])
    A.valu(f"v_add_u32 v14, s{S_W4096}, v14", rd=[T1], wr=[T1], srd=[S_W4096])
    A.valu("v_add_u32 v4, v13, v14", rd=[T0, T1], wr=[V_DK])
    A.valu("v_lshlrev_b32 v13, 1, v3", rd=[V_G], wr=[T0])
    A.valu("v_xor_b32 v13, v2, v13", rd=[V_M, T0], wr=[T0])
    A.valu("v_lshlrev_b32 v13, 4, v13", rd=[T0], wr=[T0])
    A.valu("v_add_u32 v5, v13, v14", rd=[T0, T1], wr=[V_DV])
    A.salu(f"s_and_b32 s7, s{S_W}, 1")
    A.salu("s_lshl_b32 s7, s7, 3")
    A.valu("v_lshlrev_b32 v13, 1, v3", rd=[V_G], wr=[T0])
    A.valu("v_xor_b32 v13, s7, v13", rd=[T0], wr=[T0])
    A.valu("v_xor_b32 v13, v2, v13", rd=[V_M, T0], wr=[T0])
    A.valu("v_lshlrev_b32 v13, 4, v13", rd=[T0], wr=[T0])
    A.salu(f"s_lshl_b32 s7, s{S_W}, 16")
    A.valu("v_lshlrev_b32 v14, 13, v3", rd=[V_G], wr=[T1])
    A.valu("v_add_u32 v14, s7, v14", rd=[T1], wr=[T1])
    A.valu("v_add_u32 v6, v13, v14", rd=[T0, T1], wr=[V_DW0])
    A.valu("v_add_u32 v7, 31744, v6", rd=[V_DW0], wr=[V_DW1])
    A.valu("v_lshrrev_b32 v13, 1, v3", rd=[V_G], wr=[T0])
    A.valu("v_xor_b32 v13, v2, v13", rd=[V_M, T0], wr=[T0])
    A.valu("v_lshlrev_b32 v13, 4, v13", rd=[T0], wr=[T0])
    A.valu("v_lshlrev_b32 v14, 8, v2", rd=[V_M], wr=[T1])
    A.valu("v_add_u32 v13, v13, v14", rd=[T0, T1], wr=[T0])
    A.valu("v_and_b32 v14, 1, v3", rd=[V_G], wr=[T1])
    A.valu("v_lshlrev_b32 v15, 3, v14", rd=[T1], wr=[T2])
    A.valu("v_add_u32 v8, v13, v15", rd=[T0, T2], wr=[V_KB])
    A.valu("v_lshrrev_b32 v13, 2, v1", rd=[V_LANE], wr=[T0])
    A.valu("v_and_b32 v13, 3, v13", rd=[T0], wr=[T0])
    A.valu("v_lshlrev_b32 v14, 2, v14", rd=[T1], wr=[T1])
    A.valu("v_add_u32 v14, v13, v14", rd=[T0, T1], wr=[T1])
    A.valu("v_lshlrev_b32 v14, 5, v14", rd=[T1], wr=[T1])
    A.valu("v_and_b32 v15, 3, v1", rd=[V_LANE], wr=[T2])
    A.valu("v_lshlrev_b32 v15, 3, v15", rd=[T2], wr=[T2])
    A.valu("v_add_u32 v14, v14, v15", rd=[T1, T2], wr=[T1])
    A.valu("v_lshlrev_b32 v15, 2, v3", rd=[V_G], wr=[T2])
    A.valu("v_add_u32 v15, v15, v13", rd=[T2, T0], wr=[T2])
    A.valu("v_lshlrev_b32 v15, 8, v15", rd=[T2], wr=[T2])
    A.valu("v_add_u32 v9, v15, v14", rd=[T2, T1], wr=[V_VB])
    A.valu("v_lshlrev_b32 v15, 3, v3", rd=[V_G], wr=[T2])
    A.valu("v_add_u32 v15, v15, v13", rd=[T2, T0], wr=[T2])
    A.valu("v_lshlrev_b32 v15, 8, v15", rd=[T2], wr=[T2])
    A.valu("v_add_u32 v10, v15, v14", rd=[T2, T1], wr=[V_WB])
    A.valu("v_mul_u32_u24 v13, 1280, v2", rd=[V_M], wr=[T0])
    A.valu("v_lshlrev_b32 v14, 4, v3", rd=[V_G], wr=[T1])
    A.valu("v_add_u32 v11, v13, v14", rd=[T0, T1], wr=[V_XV])
    A.valu("v_lshlrev_b32 v12, 4, v1", rd=[V_LANE], wr=[V_L16])

    nt = " nt" if KV_NT else ""

    def slot_base(n): return ((n + 2) % 5) * 16384

    def kv_dma(n, i):
        isv = n & 1
        blk = n >> 1
        srd = SV if isv else SK
        if i == 0 or True:
            A.salu(f"s_add_u32 m0, s{S_W4096}, {slot_base(n)}", m0w=True)
        if isv:
            x = (i & 1) << 7
            base = V_DV
        else:
            x = i << 6
            base = V_DK
        if x:
            A.valu(f"v_xor_b32 v13, {x}, v{base}", rd=[base], wr=[T0])
            va = T0
        else:
            va = base
        A.salu(f"s_mov_b32 s68, {blk * 16384}")
        A.vmem(f"buffer_load_dwordx4 v{va}, {sr(srd, 4)}, s68 offen offset:{i * 1024}{nt} lds",
               rd=[va], tag=("kv", n), lds=True)

    QACC = OA
    QACC8 = 128
    XF = 136
    WF = [FB + 4 * i for i in range(8)] + [172, 176]
    WA = [AD + i for i in range(8)] + [244, 245]

    def xf(a, i): return XF + ((i % 3) * 3 + a) * 4

    for t in range(8):
        A.valu(f"v_xor_b32 v{WA[t]}, {t << 5}, v{V_WB}", rd=[V_WB], wr=[WA[t]]) if t else \
            A.valu(f"v_mov_b32 v{WA[t]}, v{V_WB}", rd=[V_WB], wr=[WA[t]])
    A.salu(f"s_lshl_b32 s7, s{S_W}, 6")
    A.valu(f"v_xor_b32 v{WA[8]}, s7, v{V_WB}", rd=[V_WB], wr=[WA[8]])
    A.valu(f"v_xor_b32 v{WA[9]}, 32, v{WA[8]}", rd=[WA[8]], wr=[WA[9]])

    def wq_dma(i):
        A.salu(f"s_add_u32 m0, s{S_W2048}, {(i & 3) * 8192}", m0w=True)
        A.salu(f"s_mov_b32 s68, {i * 262144}")
        A.vmem(f"buffer_load_dwordx4 v{V_DW0}, {sr(SWQ, 4)}, s68 offen lds", rd=[V_DW0], lds=True)
        A.vmem(f"buffer_load_dwordx4 v{V_DW1}, {sr(SWQ, 4)}, s68 offen offset:1024 lds", rd=[V_DW1],
               tag=("wq", i), lds=True)

    def x_load(i):
        for a in range(3):
            d = xf(a, i)
            A.vmem(f"buffer_load_dwordx4 {vr(d, 4)}, v{V_XV}, {sr(SX, 4)}, s{S_XO[a]} offen offset:{64 * i}",
                   rd=[V_XV], wr=rng(d, 4))

    NQ = 20
    kvq = [(n, i) for n in range(3) for i in range(4)]
    wq_dma(0)
    x_load(0)
    wq_dma(1)
    x_load(1)
    wq_dma(2)
    for i in range(NQ):
        A.comment(f"---- qproj step {i}")
        A.wait_vm_tag(("wq", i))
        A.barrier()
        if i + 3 < NQ:
            wq_dma(i + 3)
        if i + 2 < NQ:
            x_load(i + 2)
        if kvq:
            kv_dma(*kvq.pop(0))
        sl = (i & 3) * 8192
        for f in range(10):
            for p in range(2):
                A.ds(f"ds_read_b64_tr_b16 {vr(WF[f] + 2 * p, 2)}, v{WA[f]} offset:{sl + 1024 * p}",
                     rd=[WA[f]], wr=rng(WF[f] + 2 * p, 2))
        for t in range(8):
            for a in range(2):
                d = QACC + (a * 8 + t) * 4
                A.mfma(d, WF[t], xf(a, i), d if i else None)
        for tt in range(2):
            d = QACC8 + tt * 4
            A.mfma(d, WF[8 + tt], xf(2, i), d if i else None)
    while kvq:
        kv_dma(*kvq.pop(0))
    for a in range(2):
        for s in range(4):
            for hlf in range(2):
                src = QACC + (a * 8 + 2 * s + hlf) * 4
                dst = qf(a, s) + 2 * hlf
                A.valu(f"v_cvt_pk_bf16_f32 v{dst}, v{src}, v{src+1}", rd=[src, src + 1], wr=[dst])
                A.valu(f"v_cvt_pk_bf16_f32 v{dst+1}, v{src+2}, v{src+3}", rd=[src + 2, src + 3], wr=[dst + 1])
    q8 = TMP
    for hlf in range(2):
        src = QACC8 + hlf * 4
        dst = q8 + 2 * hlf
        A.valu(f"v_cvt_pk_bf16_f32 v{dst}, v{src}, v{src+1}", rd=[src, src + 1], wr=[dst])
        A.valu(f"v_cvt_pk_bf16_f32 v{dst+1}, v{src+2}, v{src+3}", rd=[src + 2, src + 3], wr=[dst + 1])
    A.wait_lg_all()
    A.barrier()
    for i in range(4):
        kv_dma(3, i)
    A.salu(f"s_lshl_b32 s7, s{S_W}, 10")
    A.valu(f"v_add_u32 v13, s7, v{V_L16}", rd=[V_L16], wr=[T0])
    A.ds(f"ds_write_b128 v13, {vr(q8, 4)} offset:16384", rd=[T0] + rng(q8, 4))
    A.wait_lg_all()
    A.barrier()
    for s in range(4):
        A.ds(f"ds_read_b128 {vr(qf(2, s), 4)}, v{V_L16} offset:{16384 + 1024 * s}", rd=[V_L16], wr=rng(qf(2, s), 4))
    A.wait_lg_all()

    def xlane_reduce(op, x, t1, t2):
        A.valu(f"v_mov_b32 v{t1}, v{x}", rd=[x], wr=[t1])
        A.valu(f"v_permlane32_swap_b32 v{x}, v{t1}", rd=[x, t1], wr=[x, t1], perm=True)
        A.valu(f"{op} v{x}, v{x}, v{t1}", rd=[x, t1], wr=[x])
        A.valu(f"v_mov_b32 v{t1}, v{x}", rd=[x], wr=[t1])
        A.valu(f"v_permlane16_swap_b32 v{x}, v{t1}", rd=[x, t1], wr=[x, t1], perm=True)
        A.valu(f"{op} v{x}, v{x}, v{t1}", rd=[x, t1], wr=[x])

    fbi = [0]

    def next_fb():
        b = FB + 4 * fbi[0]
        fbi[0] = (fbi[0] + 1) % 8
        return b

    for kb in range(8):
        nK = 2 * kb
        nV = 2 * kb + 1
        A.wait_vm_tag(("kv", nK))
        A.wait_lg_all()
        A.barrier()
        if nK + 4 < 16:
            for i in range(4):
                kv_dma(nK + 4, i)
        A.valu(f"v_add_u32 v{AD}, {slot_base(nK)}, v{V_KB}", rd=[V_KB], wr=[AD]) if slot_base(nK) else \
            A.valu(f"v_mov_b32 v{AD}, v{V_KB}", rd=[V_KB], wr=[AD])
        for j in range(1, 8):
            A.valu(f"v_xor_b32 v{AD+j}, {j << 5}, v{AD}", rd=[AD], wr=[AD + j])
        frags = [(kt, s) for kt in range(4) for s in range(4)] + [(8, s) for s in range(4)]
        bufs = {}

        def issue(f):
            kt, s = frags[f]
            b = next_fb()
            bufs[f] = b
            for p in range(2):
                ad = AD + 2 * s + p
                if kt == 8:
                    A.valu(f"v_add_u32 v{TMP + p}, s{S_W4096}, v{ad}", rd=[ad], wr=[TMP + p])
                    A.ds(f"ds_read_b64 {vr(b + 2 * p, 2)}, v{TMP + p}", rd=[TMP + p], wr=rng(b + 2 * p, 2))
                else:
                    A.ds(f"ds_read_b64 {vr(b + 2 * p, 2)}, v{ad} offset:{kt * 4096}", rd=[ad], wr=rng(b + 2 * p, 2))
        PD = 6
        for f in range(PD):
            issue(f)
        for f in range(len(frags)):
            kt, s = frags[f]
            b = bufs[f]
            if kt == 8:
                d = ss(2, 0)
                A.mfma(d, b, qf(2, s), d if s else None)
            else:
                for a in range(2):
                    d = ss(a, kt)
                    A.mfma(d, b, qf(a, s), d if s else None)
            if f + PD < len(frags):
                issue(f + PD)

        ALPHA = [TMP + 2, TMP + 3, TMP + 4]
        MC = [TMP + 5, TMP + 6, TMP + 7]
        BM = [TMP + 8, TMP + 9, TMP + 10]
        for a in range(3):
            vals = rng(ss(a, 0), 16 if a < 2 else 4)
            bm = BM[a]
            if kb > 0:
                vals2 = vals + [V_MX[a]]
            else:
                vals2 = list(vals)
            A.valu(f"v_max3_f32 v{bm}, v{vals2[0]}, v{vals2[1]}, v{vals2[2]}", rd=vals2[0:3], wr=[bm])
            rest = vals2[3:]
            while rest:
                if len(rest) >= 2:
                    A.valu(f"v_max3_f32 v{bm}, v{bm}, v{rest[0]}, v{rest[1]}", rd=[bm] + rest[0:2], wr=[bm])
                    rest = rest[2:]
                else:
                    A.valu(f"v_max_f32 v{bm}, v{bm}, v{rest[0]}", rd=[bm, rest[0]], wr=[bm])
                    rest = []
        for a in range(3):
            xlane_reduce("v_max_f32", BM[a], TMP + 11, TMP + 12)
        for a in range(3):
            bm = BM[a]
            A.valu(f"v_mul_f32 v{MC[a]}, s{S_C}, v{bm}", rd=[bm], wr=[MC[a]])
            if kb > 0:
                A.valu(f"v_fma_f32 v{ALPHA[a]}, v{V_MX[a]}, s{S_C}, -v{MC[a]}", rd=[V_MX[a], MC[a]], wr=[ALPHA[a]])
                A.valu(f"v_exp_f32 v{ALPHA[a]}, v{ALPHA[a]}", rd=[ALPHA[a]], wr=[ALPHA[a]], trans=True)
            A.valu(f"v_mov_b32 v{V_MX[a]}, v{bm}", rd=[bm], wr=[V_MX[a]])
        for a in range(3):
            vals = rng(ss(a, 0), 16 if a < 2 else 4)
            for v in vals:
                A.valu(f"v_fma_f32 v{v}, v{v}, s{S_C}, -v{MC[a]}", rd=[v, MC[a]], wr=[v])
            for v in vals:
                A.valu(f"v_exp_f32 v{v}, v{v}", rd=[v], wr=[v], trans=True)
            ls = V_LS[a]
            if kb > 0:
                A.valu(f"v_fma_f32 v{ls}, v{ls}, v{ALPHA[a]}, v{vals[0]}", rd=[ls, ALPHA[a], vals[0]], wr=[ls])
            else:
                A.valu(f"v_mov_b32 v{ls}, v{vals[0]}", rd=[vals[0]], wr=[ls])
            for v in vals[1:]:
                A.valu(f"v_add_f32 v{ls}, v{ls}, v{v}", rd=[ls, v], wr=[ls])
            if a < 2:
                for ks in range(2):
                    b0 = ss(a, 2 * ks)
                    for q in range(4):
                        A.valu(f"v_cvt_pk_bf16_f32 v{b0+q}, v{b0+2*q}, v{b0+2*q+1}",
                               rd=[b0 + 2 * q, b0 + 2 * q + 1], wr=[b0 + q])
            else:
                b0 = ss(2, 0)
                for q in range(2):
                    A.valu(f"v_cvt_pk_bf16_f32 v{b0+q}, v{b0+2*q}, v{b0+2*q+1}",
                           rd=[b0 + 2 * q, b0 + 2 * q + 1], wr=[b0 + q])
            if kb > 0:
                for v in rng(oa(a, 0), 32):
                    A.valu(f"v_mul_f32 v{v}, v{v}, v{ALPHA[a]}", rd=[v, ALPHA[a]], wr=[v])

        A.wait_vm_tag(("kv", nV))
        A.wait_lg_all()
        A.barrier()
        if nV + 4 < 16:
            for i in range(4):
                kv_dma(nV + 4, i)
        A.valu(f"v_add_u32 v{AD}, {slot_base(nV)}, v{V_VB}", rd=[V_VB], wr=[AD]) if slot_base(nV) else \
            A.valu(f"v_mov_b32 v{AD}, v{V_VB}", rd=[V_VB], wr=[AD])
        for j in range(1, 8):
            A.valu(f"v_xor_b32 v{AD+j}, {j << 5}, v{AD}", rd=[AD], wr=[AD + j])
        frags = [(ks, t) for ks in range(2) for t in range(8)] + [(8, t) for t in range(0, 8, 2)]
        bufs = {}

        def issue_v(f):
            ks, t = frags[f]
            b = next_fb()
            bufs[f] = b
            for p in range(2):
                if ks == 8:
                    ad = AD + t + p
                    A.valu(f"v_add_u32 v{TMP + p}, s{S_W4096}, v{ad}", rd=[ad], wr=[TMP + p])
                    A.ds(f"ds_read_b64_tr_b16 {vr(b + 2 * p, 2)}, v{TMP + p}", rd=[TMP + p], wr=rng(b + 2 * p, 2))
                else:
                    ad = AD + t
                    A.ds(f"ds_read_b64_tr_b16 {vr(b + 2 * p, 2)}, v{ad} offset:{(32 * ks + 16 * p) * 256}",
                         rd=[ad], wr=rng(b + 2 * p, 2))
        for f in range(PD):
            issue_v(f)
        for f in range(len(frags)):
            ks, t = frags[f]
            b = bufs[f]
            first = (kb == 0 and ks in (0, 8))
            if ks == 8:
                for p in range(2):
                    d = oa(2, t + p)
                    A.mfma(d, b + 2 * p, ss(2, 0), None if first else d, na=2)
            else:
                for a in range(2):
                    d = oa(a, t)
                    A.mfma(d, b, ss(a, 2 * ks), None if first else d)
            if f + PD < len(frags):
                issue_v(f + PD)

    for a in range(3):
        xlane_reduce("v_add_f32", V_LS[a], TMP + 11, TMP + 12)
    A.salu(f"s_lshl_b32 s7, s{S_W}, 13")
    A.salu("s_add_u32 s7, s7, 49152")
    A.valu(f"v_add_u32 v13, s7, v{V_L16}", rd=[V_L16], wr=[T0])
    for t in range(8):
        A.ds(f"ds_write_b128 v13, {vr(oa(2, t), 4)} offset:{t * 1024}", rd=[T0] + rng(oa(2, t), 4))
    A.valu(f"v_mov_b32 v{TMP}, v{V_MX[2]}", rd=[V_MX[2]], wr=[TMP])
    A.valu(f"v_mov_b32 v{TMP+1}, v{V_LS[2]}", rd=[V_LS[2]], wr=[TMP + 1])
    A.salu(f"s_lshl_b32 s7, s{S_W}, 9")
    A.valu(f"v_lshlrev_b32 v14, 3, v{V_LANE}", rd=[V_LANE], wr=[T1])
    A.valu("v_add_u32 v15, s7, v14", rd=[T1], wr=[T2])
    A.ds(f"ds_write_b64 v15, {vr(TMP, 2)}", rd=[T2, TMP, TMP + 1])
    for a in range(2):
        inv = TMP + 2 + a
        A.valu(f"v_rcp_f32 v{inv}, v{V_LS[a]}", rd=[V_LS[a]], wr=[inv], trans=True)
        for v in rng(oa(a, 0), 32):
            A.valu(f"v_mul_f32 v{v}, v{v}, v{inv}", rd=[v, inv], wr=[v])
        for s in range(4):
            b0 = oa(a, 2 * s)
            for q in range(4):
                A.valu(f"v_cvt_pk_bf16_f32 v{b0+q}, v{b0+2*q}, v{b0+2*q+1}", rd=[b0 + 2 * q, b0 + 2 * q + 1], wr=[b0 + q])
            A.vmem(f"buffer_store_dwordx4 {vr(b0, 4)}, v{V_L16}, {sr(SO, 4)}, s{S_OO[a]} offen offset:{s * 1024}",
                   rd=[V_L16] + rng(b0, 4), store_data=rng(b0, 4))
    A.wait_lg_all()
    A.barrier()
    ML = SS
    PART = FB
    for j in range(4):
        A.ds(f"ds_read_b64 {vr(ML + 2 * j, 2)}, v14 offset:{j * 512}", rd=[T1], wr=rng(ML + 2 * j, 2))
    A.salu(f"s_add_u32 s7, s{S_W2048}, 49152")
    A.valu(f"v_add_u32 v13, s7, v{V_L16}", rd=[V_L16], wr=[T0])
    for j in range(4):
        for tt in range(2):
            d = PART + j * 8 + tt * 4
            A.ds(f"ds_read_b128 {vr(d, 4)}, v13 offset:{j * 8192 + tt * 1024}", rd=[T0], wr=rng(d, 4))
    M = TMP
    A.valu(f"v_max3_f32 v{M}, v{ML}, v{ML+2}, v{ML+4}", rd=[ML, ML + 2, ML + 4], wr=[M])
    A.valu(f"v_max_f32 v{M}, v{M}, v{ML+6}", rd=[M, ML + 6], wr=[M])
    A.valu(f"v_mul_f32 v{M}, s{S_C}, v{M}", rd=[M], wr=[M])
    F = [TMP + 1 + j for j in range(4)]
    for j in range(4):
        A.valu(f"v_fma_f32 v{F[j]}, v{ML+2*j}, s{S_C}, -v{M}", rd=[ML + 2 * j, M], wr=[F[j]])
    for j in range(4):
        A.valu(f"v_exp_f32 v{F[j]}, v{F[j]}", rd=[F[j]], wr=[F[j]], trans=True)
    L = TMP + 5
    A.valu(f"v_mul_f32 v{L}, v{ML+1}, v{F[0]}", rd=[ML + 1, F[0]], wr=[L])
    for j in range(1, 4):
        A.valu(f"v_fma_f32 v{L}, v{ML+2*j+1}, v{F[j]}, v{L}", rd=[ML + 2 * j + 1, F[j], L], wr=[L])
    A.valu(f"v_rcp_f32 v{L}, v{L}", rd=[L], wr=[L], trans=True)
    for j in range(4):
        A.valu(f"v_mul_f32 v{F[j]}, v{F[j]}, v{L}", rd=[F[j], L], wr=[F[j]])
    for q in range(8):
        d = PART + q
        A.valu(f"v_mul_f32 v{d}, v{d}, v{F[0]}", rd=[d, F[0]], wr=[d])
        for j in range(1, 4):
            A.valu(f"v_fma_f32 v{d}, v{PART + j * 8 + q}, v{F[j]}, v{d}", rd=[PART + j * 8 + q, F[j], d], wr=[d])
    for q in range(4):
        A.valu(f"v_cvt_pk_bf16_f32 v{PART+q}, v{PART+2*q}, v{PART+2*q+1}", rd=[PART + 2 * q, PART + 2 * q + 1], wr=[PART + q])
    A.vmem(f"buffer_store_dwordx4 {vr(PART, 4)}, v{V_L16}, {sr(SO, 4)}, s{S_OO[2]} offen",
           rd=[V_L16] + rng(PART, 4), store_data=rng(PART, 4))
    A.wait_vm_all()
    A.label("L_k1_end")
    A.raw("s_endpgm")
    return A.text()


def gen_k2():
    A = Asm()
    SOW, SWO, SOUT = 40, 44, 48
    S_W = 60
    S_BO = [64 + i for i in range(6)]
    S_LB = 70
    S_KB = 71
    ACC = 16
    BF = 112
    AF = 184
    TA = 216
    DV = 220
    V_L16 = 224
    V_LANE, V_M, V_G = 1, 2, 3
    T0, T1, T2 = 13, 14, 15

    def acc(mt, n): return ACC + (mt * 6 + n) * 4
    def bf(i, n): return BF + ((i % 3) * 6 + n) * 4
    def af(i, mt): return AF + ((i & 1) * 4 + mt) * 4

    A.label(K2)
    A.raw("s_cmp_ge_u32 s2, 240")
    A.raw("s_cbranch_scc1 L_k2_end")
    A.raw("s_load_dwordx2 s[16:17], s[0:1], 32")
    A.raw("s_load_dwordx2 s[18:19], s[0:1], 72")
    A.raw("s_load_dwordx2 s[20:21], s[0:1], 80")
    A.raw("s_load_dwordx2 s[22:23], s[0:1], 96")
    A.salu("s_and_b32 s3, s2, 7")
    A.salu("s_lshr_b32 s4, s2, 3")
    A.salu("s_mul_i32 s5, s4, 43")
    A.salu("s_lshr_b32 s5, s5, 8")
    A.salu("s_mul_i32 s6, s5, 6")
    A.salu("s_sub_u32 s6, s4, s6")
    A.salu("s_lshr_b32 s7, s3, 2")
    A.salu("s_bfe_u32 s8, s3, 0x10001")
    A.salu("s_mul_i32 s8, s8, 6")
    A.salu("s_add_u32 s8, s8, s6")
    A.salu("s_and_b32 s9, s3, 1")
    A.salu("s_mul_i32 s9, s9, 5")
    A.salu("s_add_u32 s9, s9, s5")
    A.valu("v_and_b32 v1, 63, v0", rd=[0], wr=[V_LANE])
    A.valu("v_lshrrev_b32 v13, 6, v0", rd=[0], wr=[T0])
    A.valu("v_and_b32 v2, 15, v0", rd=[0], wr=[V_M])
    A.valu("v_lshrrev_b32 v3, 4, v1", rd=[V_LANE], wr=[V_G])
    A.valu(f"v_readfirstlane_b32 s{S_W}, v13", rd=[T0], swr=[S_W], rfl=True)
    A.raw("s_waitcnt lgkmcnt(0)")
    A.salu("s_cmp_eq_u32 s7, 0")
    A.salu("s_cselect_b64 s[10:11], s[16:17], s[18:19]")
    A.salu("s_lshl_b32 s12, s9, 7")
    A.salu(f"s_add_u32 s{SWO}, s10, s12")
    A.salu(f"s_addc_u32 s{SWO+1}, s11, 0")
    A.salu(f"s_and_b32 s{SWO+1}, s{SWO+1}, 0xffff")
    A.salu(f"s_sub_u32 s{SWO+2}, {4096*1280}, s12")
    A.salu(f"s_mov_b32 s{SWO+3}, 0x20000")
    A.salu(f"s_mul_i32 s12, s7, {8*32*36864}")
    A.salu(f"s_add_u32 s{SOW}, s22, s12")
    A.salu(f"s_addc_u32 s{SOW+1}, s23, 0")
    A.salu(f"s_and_b32 s{SOW+1}, s{SOW+1}, 0xffff")
    A.salu(f"s_mov_b32 s{SOW+2}, {8*32*36864}")
    A.salu(f"s_mov_b32 s{SOW+3}, 0x20000")
    A.salu(f"s_mov_b32 s{SOUT}, s20")
    A.salu(f"s_and_b32 s{SOUT+1}, s21, 0xffff")
    A.salu(f"s_mov_b32 s{SOUT+2}, {8*144*1280*2}")
    A.salu(f"s_mov_b32 s{SOUT+3}, 0x20000")
    A.salu(f"s_mul_i32 s13, s{S_W}, {4*36864}", srd=[S_W])
    for n in range(6):
        A.salu("s_mul_i32 s12, s8, 6")
        A.salu(f"s_add_u32 s12, s12, {n}")
        A.salu("s_mul_i32 s14, s12, 57")
        A.salu("s_lshr_b32 s14, s14, 9")
        A.salu("s_mul_i32 s15, s14, 9")
        A.salu("s_sub_u32 s15, s12, s15")
        A.salu(f"s_mul_i32 s14, s14, {32*36864}")
        A.salu("s_lshl_b32 s15, s15, 12")
        A.salu("s_add_u32 s14, s14, s15")
        A.salu(f"s_add_u32 s{S_BO[n]}, s14, s13")
    A.salu(f"s_lshl_b32 s{S_LB}, s{S_W}, 14")
    A.salu(f"s_mul_i32 s{S_KB}, s{S_W}, {512*1280}")
    A.valu("v_lshrrev_b32 v13, 3, v1", rd=[V_LANE], wr=[T0])
    A.valu("v_and_b32 v14, 6, v13", rd=[T0], wr=[T1])
    A.valu("v_and_b32 v15, 7, v1", rd=[V_LANE], wr=[T2])
    A.valu("v_xor_b32 v14, v14, v15", rd=[T1, T2], wr=[T1])
    A.valu("v_lshlrev_b32 v14, 4, v14", rd=[T1], wr=[T1])
    A.valu("v_mul_u32_u24 v13, 1280, v13", rd=[T0], wr=[T0])
    A.valu(f"v_add_u32 v{DV}, v13, v14", rd=[T0, T1], wr=[DV])
    for ii in range(1, 4):
        A.valu(f"v_add_u32 v{DV+ii}, {ii * 9216}, v{DV}", rd=[DV], wr=[DV + ii])
    A.valu("v_lshrrev_b32 v13, 2, v1", rd=[V_LANE], wr=[T0])
    A.valu("v_lshrrev_b32 v14, 1, v13", rd=[T0], wr=[T1])
    A.valu("v_and_b32 v14, 3, v14", rd=[T1], wr=[T1])
    A.valu("v_lshlrev_b32 v14, 5, v14", rd=[T1], wr=[T1])
    A.valu("v_lshlrev_b32 v13, 7, v13", rd=[T0], wr=[T0])
    A.valu("v_add_u32 v13, v13, v14", rd=[T0, T1], wr=[T0])
    A.valu("v_and_b32 v14, 3, v1", rd=[V_LANE], wr=[T1])
    A.valu("v_lshlrev_b32 v14, 3, v14", rd=[T1], wr=[T1])
    A.valu("v_add_u32 v13, v13, v14", rd=[T0, T1], wr=[T0])
    A.valu(f"v_add_u32 v{TA}, s{S_LB}, v13", rd=[T0], wr=[TA])
    for t in range(1, 4):
        A.valu(f"v_xor_b32 v{TA+t}, {t << 5}, v{TA}", rd=[TA], wr=[TA + t])
    A.valu(f"v_lshlrev_b32 v{V_L16}, 4, v1", rd=[V_LANE], wr=[V_L16])

    NS = 16

    def dma(i):
        A.salu(f"s_add_u32 m0, s{S_LB}, {(i & 3) * 4096}", m0w=True)
        A.salu(f"s_add_u32 s12, s{S_KB}, {i * 32 * 1280}")
        for ii in range(4):
            A.vmem(f"buffer_load_dwordx4 v{DV+ii}, {sr(SWO, 4)}, s12 offen offset:{ii * 1024} lds",
                   rd=[DV + ii], tag=("wo", i), lds=True)

    def bload(i):
        hh, s = i >> 2, i & 3
        for n in range(6):
            d = bf(i, n)
            if s == 0 and hh > 0:
                A.salu(f"s_add_u32 s{S_BO[n]}, s{S_BO[n]}, 36864")
            A.vmem(f"buffer_load_dwordx4 {vr(d, 4)}, v{V_L16}, {sr(SOW, 4)}, s{S_BO[n]} offen offset:{s * 1024}",
                   rd=[V_L16], wr=rng(d, 4))

    def aread(i):
        A.wait_vm_tag(("wo", i))
        for mt in range(4):
            for p in range(2):
                d = af(i, mt) + 2 * p
                A.ds(f"ds_read_b64_tr_b16 {vr(d, 2)}, v{TA+mt} offset:{(i & 3) * 4096 + 2048 * p}",
                     rd=[TA + mt], wr=rng(d, 2))

    dma(0)
    bload(0)
    dma(1)
    bload(1)
    dma(2)
    aread(0)
    for i in range(NS):
        A.comment(f"---- k-step {i}")
        if i + 3 < NS:
            dma(i + 3)
        if i + 2 < NS:
            bload(i + 2)
        if i + 1 < NS:
            aread(i + 1)
        for mt in range(4):
            for n in range(6):
                d = acc(mt, n)
                A.mfma(d, af(i, mt), bf(i, n), d if i else None)
    A.wait_lg_all()
    A.wait_vm_all()
    A.barrier()
    A.salu(f"s_and_b32 s12, s{S_W}, 3")
    A.salu("s_mul_i32 s12, s12, 24576")
    A.valu(f"v_add_u32 v13, s12, v{V_L16}", rd=[V_L16], wr=[T0])
    A.nop(8)
    A.salu(f"s_cmp_ge_u32 s{S_W}, 4")
    A.raw("s_cbranch_scc0 L_k2_lo")
    st = (A.slot, dict(A.w_valu), dict(A.w_mfma), dict(A.mfma_d))
    for j in range(24):
        A.ds(f"ds_write_b128 v13, {vr(ACC + 4 * j, 4)} offset:{j * 1024}", rd=[T0] + rng(ACC + 4 * j, 4))
    A.wait_lg_all()
    A.barrier()
    A.barrier()
    A.raw("s_branch L_k2_join")
    A.label("L_k2_lo")
    A.barrier()
    for j in range(24):
        d = BF + 4 * (j % 16)
        A.ds(f"ds_read_b128 {vr(d, 4)}, v13 offset:{j * 1024}", rd=[T0], wr=rng(d, 4))
        if j >= 8:
            jj = j - 8
            dd = BF + 4 * (jj % 16)
            for q in range(4):
                A.valu(f"v_add_f32 v{ACC+4*jj+q}, v{ACC+4*jj+q}, v{dd+q}", rd=[ACC + 4 * jj + q, dd + q], wr=[ACC + 4 * jj + q])
    for jj in range(16, 24):
        dd = BF + 4 * (jj % 16)
        for q in range(4):
            A.valu(f"v_add_f32 v{ACC+4*jj+q}, v{ACC+4*jj+q}, v{dd+q}", rd=[ACC + 4 * jj + q, dd + q], wr=[ACC + 4 * jj + q])
    for j in range(24):
        A.ds(f"ds_write_b128 v13, {vr(ACC + 4 * j, 4)} offset:{j * 1024}", rd=[T0] + rng(ACC + 4 * j, 4))
    A.wait_lg_all()
    A.barrier()
    A.label("L_k2_join")
    A.nop(4)
    A.salu(f"s_mul_i32 s12, s{S_W}, 3072")
    A.valu(f"v_add_u32 v13, s12, v{V_L16}", rd=[V_L16], wr=[T0])
    A.valu("v_add_u32 v12, 49152, v13", rd=[T0], wr=[12])
    for j in range(3):
        for src in range(4):
            d = BF + (j * 4 + src) * 4
            ar = T0 if src < 2 else 12
            A.ds(f"ds_read_b128 {vr(d, 4)}, v{ar} offset:{(src & 1) * 24576 + j * 1024}", rd=[ar], wr=rng(d, 4))
    A.valu("v_mul_u32_u24 v14, 2560, v2", rd=[V_M], wr=[T1])
    A.valu("v_lshlrev_b32 v15, 3, v3", rd=[V_G], wr=[T2])
    A.valu("v_add_u32 v14, v14, v15", rd=[T1, T2], wr=[T1])
    A.salu("s_mul_i32 s13, s8, 6")
    A.salu("s_mul_i32 s14, s7, 1280")
    A.salu("s_lshl_b32 s15, s9, 7")
    A.salu("s_add_u32 s14, s14, s15")
    for j in range(3):
        d = BF + j * 16
        for q in range(4):
            A.valu(f"v_add_f32 v{d+q}, v{d+q}, v{d+4+q}", rd=[d + q, d + 4 + q], wr=[d + q])
            A.valu(f"v_add_f32 v{d+8+q}, v{d+8+q}, v{d+12+q}", rd=[d + 8 + q, d + 12 + q], wr=[d + 8 + q])
        for q in range(4):
            A.valu(f"v_add_f32 v{d+q}, v{d+q}, v{d+8+q}", rd=[d + q, d + 8 + q], wr=[d + q])
        A.valu(f"v_cvt_pk_bf16_f32 v{d}, v{d}, v{d+1}", rd=[d, d + 1], wr=[d])
        A.valu(f"v_cvt_pk_bf16_f32 v{d+1}, v{d+2}, v{d+3}", rd=[d + 2, d + 3], wr=[d + 1])
        A.salu(f"s_mul_i32 s12, s{S_W}, 3")
        A.salu(f"s_add_u32 s12, s12, {j}")
        A.salu("s_mul_i32 s15, s12, 43")
        A.salu("s_lshr_b32 s15, s15, 8")
        A.salu("s_mul_i32 s16, s15, 6")
        A.salu("s_sub_u32 s12, s12, s16")
        A.salu("s_add_u32 s12, s12, s13")
        A.salu(f"s_mul_i32 s12, s12, {16*2560}")
        A.salu("s_lshl_b32 s15, s15, 5")
        A.salu("s_add_u32 s12, s12, s15")
        A.salu("s_add_u32 s12, s12, s14")
        A.vmem(f"buffer_store_dwordx2 {vr(d, 2)}, v14, {sr(SOUT, 4)}, s12 offen", rd=[T1, d, d + 1])
    A.wait_vm_all()
    A.label("L_k2_end")
    A.raw("s_endpgm")
    return A.text()


HEADER = open("cdna_kernels/" + NAME + ".s.ref").read().split("; Override launch geometry")[0]


def desc(name, nv):
    return f""".amdhsa_kernel {name}
  .amdhsa_next_free_vgpr {nv}
  .amdhsa_next_free_sgpr 96
  .amdhsa_accum_offset {nv}
  .amdhsa_group_segment_fixed_size 0
  .amdhsa_kernarg_size 104
  .amdhsa_user_sgpr_count 2
  .amdhsa_user_sgpr_kernarg_segment_ptr 1
  .amdhsa_system_sgpr_workgroup_id_x 1
.end_amdhsa_kernel
"""


def main():
    out = HEADER
    out += f"; @launch kernel={K1} grid=(512,1,1) block=(256,1,1) lds=81920\n"
    out += f"; @launch kernel={K2} grid=(240,1,1) block=(512,1,1) lds=131072\n"
    out += '.amdgcn_target "amdgcn-amd-amdhsa--gfx950"\n.text\n'
    out += f".globl {K1}\n.p2align 8\n.type {K1},@function\n"
    out += gen_k1()
    out += f".globl {K2}\n.p2align 8\n.type {K2},@function\n"
    out += gen_k2()
    out += '.section .rodata,"a"\n.p2align 6\n'
    out += desc(K1, 256)
    out += ".p2align 6\n"
    out += desc(K2, 256)
    path = sys.argv[1] if len(sys.argv) > 1 else "cdna_kernels/" + NAME + ".s"
    open(path, "w").write(out)
    print("wrote", path, len(out), "bytes")


if __name__ == "__main__":
    main()
```
